```python
import torch

def _softmax(x, axis=-1):
    return torch.softmax(x, dim=axis)

def _gelu(x):
    return torch.nn.functional.gelu(x, approximate='tanh')

def _silu(x):
    return torch.nn.functional.silu(x)

def _sigmoid(x):
    return torch.sigmoid(x)

def _layernorm(x, axis=-1, eps=1e-05):
    m = x.mean(dim=axis, keepdim=True)
    v = x.var(dim=axis, keepdim=True, unbiased=False)
    return (x - m) / torch.sqrt(v + eps)

def _scatter_add(tgt, idx, src, axis=0):
    return tgt.clone().index_add_(axis, idx, src)

def _segment_sum(src, seg, n):
    out = torch.zeros((n,) + src.shape[1:], dtype=src.dtype)
    return out.index_add_(0, seg, src)

def _pad(x, pw):
    flat = tuple((v for pair in reversed(pw) for v in pair))
    return torch.nn.functional.pad(x, flat)
kernel_name = 'standalone__tensor_product_equiv_mace__graph'

def setup_inputs():

    _w = lambda a: (lambda t: t.to(torch.bfloat16) if t.is_floating_point() else t)(torch.as_tensor(a))
    N, deg = (10000, 32)
    Lmax, C, De = (1, 128, 16)
    M = (Lmax + 1) ** 2
    E = N * deg
    src = (lambda lo, hi, *s: torch.randint(lo, hi, s))(0, N, E).to(torch.int64)
    dst = (lambda lo, hi, *s: torch.randint(lo, hi, s))(0, N, E).to(torch.int64)
    r = (lambda *s: torch.randn(*s, dtype=torch.bfloat16) * 0.05)(E, 3).to(float)
    r = r / (torch.linalg.norm(r, dim=-1, keepdim=True).to(float) + 1e-06)
    rx, ry, rz = (r[:, 0].clone(), r[:, 1].clone(), r[:, 2].clone())
    x2, y2, z2 = (rx * rx, ry * ry, rz * rz)
    sh_list = [torch.ones_like(rx), rx, ry, rz, rx * ry, ry * rz, 2.0 * z2 - x2 - y2, rx * rz, x2 - y2, ry * (3.0 * x2 - y2), rx * ry * rz, ry * (4.0 * z2 - x2 - y2), rz * (2.0 * z2 - 3.0 * x2 - 3.0 * y2), rx * (4.0 * z2 - x2 - y2), rz * (x2 - y2), rx * (x2 - 3.0 * y2)]
    sh16 = torch.stack(sh_list, dim=-1).to(float)
    pad = max(0, M - 16)
    sh_full = torch.cat([sh16, torch.zeros((E, pad), dtype=float)], dim=-1)[:, :M]
    cg = ((lambda *s: torch.randn(*s, dtype=torch.bfloat16) * 0.05)(M, M, M) * (1.0 / float(M))).to(float)
    return {'x': _w(((lambda *s: torch.randn(*s, dtype=torch.bfloat16) * 0.05)(N, M, C) * 0.3).to(float)), 'src': _w(src), 'dst': _w(dst), 'sh': _w(sh_full.to(float)), 'edge_attr': _w(((lambda *s: torch.randn(*s, dtype=torch.bfloat16) * 0.05)(E, De) * 0.3).to(float)), 'cg': _w(cg), 'w_r': _w(((lambda *s: torch.randn(*s, dtype=torch.bfloat16) * 0.05)(De, C) * (1.0 / float(De) ** 0.5)).to(float)), 'w_out': _w(((lambda *s: torch.randn(*s, dtype=torch.bfloat16) * 0.05)(C, C) * (1.0 / float(C) ** 0.5)).to(float))}

def reference(x, src, dst, sh, edge_attr, cg, w_r, w_out):
    N = x.shape[0]
    M = x.shape[1]
    C = x.shape[2]
    h = x[src]
    tp = torch.einsum('uvw,euc,ev->ewc', cg, h, sh)
    rw = edge_attr @ w_r
    msg = tp * rw[:, None, :]
    msg2 = msg.reshape(-1, M * C)
    agg = _segment_sum(msg2, dst, N).reshape(N, M, C)
    out = torch.einsum('nmc,cd->nmd', agg, w_out)
    return out
```

```python
import re

class Asm:
    def __init__(self):
        self.lines = []
        self.vm = []
        self.lg = []
    def __call__(self, text, vm=None, lg=None):
        self.lines.append(text)
        if vm is not None: self.vm.append(vm)
        if lg is not None: self.lg.append(lg)
    def raw(self, text):
        self.lines.append(text)
    def label(self, name):
        self.lines.append(name + ":")
    def comment(self, c):
        self.lines.append("    ; " + c)
    def vm_after(self, tag):
        for i in range(len(self.vm) - 1, -1, -1):
            if self.vm[i] == tag:
                return len(self.vm) - 1 - i
        raise KeyError(tag)
    def lg_after(self, tag):
        for i in range(len(self.lg) - 1, -1, -1):
            if self.lg[i] == tag:
                return len(self.lg) - 1 - i
        raise KeyError(tag)
    def text(self):
        out = []
        for l in self.lines:
            if l.endswith(":") or l.startswith(".") or l.startswith(";") or l.startswith("    ;"):
                out.append(l)
            else:
                out.append("    " + l)
        return "\n".join(out) + "\n"

def vr(a, n=1):
    return f"v{a}" if n == 1 else f"v[{a}:{a+n-1}]"
def sr(a, n=1):
    return f"s{a}" if n == 1 else f"s[{a}:{a+n-1}]"
```

```python
import sys
from asmlib import *

OPTS = sys.argv[2:]
OUT = sys.argv[1] if len(sys.argv) > 1 else "out.s"
STAMPS = "stamps" in OPTS

N_NODES = 10000; E = 320000
NB = 250; NPB = 40; CH = 1280
CELL = 96; CCAP = 23
WS_CELL = 0
WS_KEYX = 0x600000
WS_E = 0x800000
WS_S = 0x1200000
WS_END = 0x1480000
WS_STAMP = 0x1500000

counts = {}
class G(Asm):
    final = False
    def wait_vm(self, tag, site=None):
        n = self.vm_after(tag)
        if site is not None:
            if self.final: n = counts[site]
            else: counts[site] = min(counts.get(site, 99), n)
        self(f"s_waitcnt vmcnt({min(n,63)})")
    def wait_lg(self, tag, site=None):
        n = self.lg_after(tag)
        if site is not None:
            if self.final: n = counts[site]
            else: counts[site] = min(counts.get(site, 99), n)
        self(f"s_waitcnt lgkmcnt({min(n,15)})")

def srd(a, s, base_s, off, nbytes):
    if off:
        a(f"s_add_u32 s{s}, s{base_s}, {off}")
        a(f"s_addc_u32 s{s+1}, s{base_s+1}, 0")
    else:
        a(f"s_mov_b32 s{s}, s{base_s}")
        a(f"s_mov_b32 s{s+1}, s{base_s+1}")
    a(f"s_mov_b32 s{s+2}, {nbytes}")
    a(f"s_mov_b32 s{s+3}, 0x00020000")

def wave_scan(a, v):
    for sh in (1, 2, 4, 8):
        a(f"v_add_u32_dpp v{v}, v{v}, v{v} row_shr:{sh} row_mask:0xf bank_mask:0xf bound_ctrl:0")
        a("s_nop 1")
    a(f"v_add_u32_dpp v{v}, v{v}, v{v} row_bcast:15 row_mask:0xa bank_mask:0xf")
    a("s_nop 1")
    a(f"v_add_u32_dpp v{v}, v{v}, v{v} row_bcast:31 row_mask:0xc bank_mask:0xf")
    a("s_nop 1")

def kernel_header(a, name):
    a.raw(f".globl {name}"); a.raw(".p2align 8"); a.raw(f".type {name},@function")
    a.label(name)

def descriptor(a, name, nv, ns):
    a.raw(".p2align 6"); a.raw(f".amdhsa_kernel {name}")
    a.raw(f"  .amdhsa_next_free_vgpr {nv}"); a.raw(f"  .amdhsa_next_free_sgpr {ns}")
    a.raw(f"  .amdhsa_accum_offset {(nv+3)//4*4}")
    a.raw("  .amdhsa_group_segment_fixed_size 0"); a.raw("  .amdhsa_kernarg_size 88")
    a.raw("  .amdhsa_user_sgpr_count 2"); a.raw("  .amdhsa_user_sgpr_kernarg_segment_ptr 1")
    a.raw("  .amdhsa_system_sgpr_workgroup_id_x 1"); a.raw(".end_amdhsa_kernel")

def stamp_out(a, first_s, n, slot_expr_s, kidx, wsreg):
    a("s_waitcnt lgkmcnt(0)")
    for i in range(2*n):
        a(f"v_mov_b32 v{16+i}, s{first_s+i}")
    a(f"s_lshl_b32 s{slot_expr_s}, s{slot_expr_s}, 6")
    srd(a, 92, wsreg, WS_STAMP + kidx*(1<<20), 1<<20)
    a(f"v_mov_b32 v15, s{slot_expr_s}")
    a("s_mov_b64 exec, 1")
    for i in range(0, 2*n, 4):
        a(f"buffer_store_dwordx4 v[{16+i}:{19+i}], v15, s[92:95], 0 offen offset:{4*i}")

K1_T = 640
L1_E = 0; L1_S = 40960; L1_CELL = 51200; L1_KEY = 75200; L1_INV = 80320; L1_HIST = 85440; L1_BASE = 86464
L1_END = 87488

def gen_k1(a):
    kernel_header(a, "bin_kernel")
    a(f"s_cmp_ge_u32 s2, {NB}")
    a("s_cbranch_scc1 K1_end")
    if STAMPS: a("s_memrealtime s[80:81]")
    a("s_load_dwordx4 s[4:7], s[0:1], 8")
    a("s_load_dwordx4 s[8:11], s[0:1], 24")
    a("s_load_dwordx2 s[12:13], s[0:1], 80")
    a("v_lshrrev_b32 v1, 6, v0")
    a("v_and_b32 v2, 63, v0")
    a("v_readfirstlane_b32 s3, v1")
    a("v_lshlrev_b32 v3, 3, v0")
    a("v_lshlrev_b32 v4, 4, v2")
    a("v_lshlrev_b32 v5, 2, v0")
    a("v_mov_b32 v6, 0")
    a("v_mov_b32 v7, 1")
    a(f"v_add_u32 v8, {L1_HIST}, v5")
    a("v_cmp_gt_u32 vcc, 256, v0")
    a("s_and_saveexec_b64 s[14:15], vcc")
    a("ds_write_b32 v8, v6")
    a("s_mov_b64 exec, s[14:15]")
    a("s_waitcnt lgkmcnt(0)")
    srd(a, 16, 4, 0, E*4)
    srd(a, 20, 6, 0, E*4)
    srd(a, 24, 8, 0, E*8)
    srd(a, 28, 10, 0, E*32)
    srd(a, 32, 12, 0, WS_END)
    a(f"s_mul_i32 s36, s2, {CH*4}")
    a("buffer_load_dwordx2 v[10:11], v3, s[20:23], s36 offen", vm="dst")
    a("buffer_load_dwordx2 v[12:13], v3, s[16:19], s36 offen", vm="src")
    a(f"s_mul_i32 s37, s2, {CH*32}")
    a("s_lshl_b32 s38, s3, 12")
    a("s_add_u32 s37, s37, s38")
    a(f"s_add_u32 m0, s38, {L1_E}")
    a(f"s_mul_i32 s39, s2, {CH*8}")
    for i in range(4):
        a(f"buffer_load_dwordx4 v4, s[28:31], s37 offen offset:{1024*i} lds", vm=f"ea{i}")
    a("s_lshl_b32 s38, s3, 10")
    a("s_add_u32 s39, s39, s38")
    a(f"s_add_u32 m0, s38, {L1_S}")
    a("s_nop 0")
    a("buffer_load_dwordx4 v4, s[24:27], s39 offen lds", vm="sh")
    a("s_barrier")
    a("s_mov_b32 s40, 52429")
    a.wait_vm("dst")
    for i in range(2):
        a(f"v_mul_u32_u24 v{14+i}, s40, v{10+i}")
        a(f"v_lshrrev_b32 v{14+i}, 21, v{14+i}")
        a(f"v_lshlrev_b32 v{16+i}, 2, v{14+i}")
        a(f"v_add_u32 v{16+i}, {L1_HIST}, v{16+i}")
        a(f"ds_add_rtn_u32 v{18+i}, v{16+i}, v7")
    for i in range(2):
        a(f"v_mul_u32_u24 v{20+i}, 40, v{14+i}")
        a(f"v_sub_u32 v{20+i}, v{10+i}, v{20+i}")
    a.wait_vm("src")
    for i in range(2):
        a(f"v_lshl_or_b32 v{22+i}, v{20+i}, 14, v{12+i}")
    a("s_waitcnt lgkmcnt(0)")
    a("s_barrier")
    if STAMPS: a("s_memrealtime s[82:83]")
    a(f"v_add_u32 v8, {L1_HIST}, v4")
    a("ds_read_b128 v[24:27], v8")
    a("s_waitcnt lgkmcnt(0)")
    a("v_add_u32 v28, v24, v25")
    a("v_add_u32 v29, v26, v27")
    a("v_add_u32 v28, v28, v29")
    a("v_mov_b32 v29, v28")
    a("s_nop 1")
    wave_scan(a, 29)
    a("v_sub_u32 v30, v29, v28")
    a("v_add_u32 v31, v30, v24")
    a("v_add_u32 v32, v31, v25")
    a("v_add_u32 v33, v32, v26")
    a(f"v_add_u32 v8, {L1_BASE}, v4")
    a("ds_write_b128 v8, v[30:33]")
    a("s_cmp_lg_u32 s3, 0")
    a("s_cbranch_scc1 K1_nohdr")
    a("v_mul_u32_u24 v8, 384, v2")
    a(f"v_add_u32 v8, {L1_CELL}, v8")
    for i in range(4):
        a(f"v_lshl_or_b32 v{34+i}, v{24+i}, 16, v{30+i}")
    a("v_cmp_gt_u32 vcc, 63, v2")
    a("s_and_saveexec_b64 s[14:15], vcc")
    a("ds_write_b32 v8, v34")
    a("ds_write_b32 v8, v35 offset:96")
    a("v_cmp_gt_u32 vcc, 62, v2")
    a("s_and_b64 exec, exec, vcc")
    a("ds_write_b32 v8, v36 offset:192")
    a("ds_write_b32 v8, v37 offset:288")
    a("s_mov_b64 exec, s[14:15]")
    a.label("K1_nohdr")
    for i in range(2):
        a(f"v_add_u32 v{16+i}, {L1_BASE - L1_HIST}, v{16+i}")
    a("s_waitcnt lgkmcnt(0)")
    for i in range(2):
        a(f"ds_read_b32 v{38+i}, v{16+i}")
    a("s_waitcnt lgkmcnt(0)")
    for i in range(2):
        a(f"v_add_u32 v{38+i}, v{38+i}, v{18+i}")
        a(f"v_lshl_or_b32 v{22+i}, v{38+i}, 20, v{22+i}")
        a(f"v_lshlrev_b32 v{40+i}, 2, v{38+i}")
        a(f"v_add_u32 v{40+i}, {L1_KEY}, v{40+i}")
        a(f"ds_write_b32 v{40+i}, v{22+i}")
        a(f"v_lshlrev_b32 v{42+i}, 1, v0")
        if i: a(f"v_add_u32 v{42+i}, 1, v{42+i}")
        a(f"ds_write_b32 v{40+i}, v{42+i} offset:{L1_INV - L1_KEY}")
        a(f"v_and_b32 v44, 1, v{18+i}")
        a(f"v_mul_u32_u24 v44, 11, v44")
        a(f"v_lshrrev_b32 v45, 1, v{18+i}")
        a(f"v_add3_u32 v44, v44, v45, 1")
        a(f"v_mul_u32_u24 v45, 24, v{14+i}")
        a(f"v_add_u32 v44, v44, v45")
        a(f"v_lshlrev_b32 v44, 2, v44")
        a(f"v_add_u32 v44, {L1_CELL}, v44")
        a(f"v_cmp_gt_u32 vcc, {CCAP}, v{18+i}")
        a("s_and_saveexec_b64 s[14:15], vcc")
        a(f"ds_write_b32 v44, v{22+i}")
        a("s_mov_b64 exec, s[14:15]")
    a("s_waitcnt lgkmcnt(0)")
    a("s_barrier")
    if STAMPS: a("s_memrealtime s[84:85]")
    a(f"s_mul_i32 s41, s2, {CELL}")
    a("s_mov_b32 s42, 10923")
    a("s_mov_b32 s43, 24000")
    for i in range(3):
        u = 46 + i*8
        a(f"v_add_u32 v{u}, {640*i}, v0")
        a(f"v_lshlrev_b32 v{u+1}, 4, v{u}")
        a(f"v_add_u32 v{u+1}, {L1_CELL}, v{u+1}")
        if i == 2:
            a(f"v_cmp_gt_u32 vcc, 1500, v{u}")
            a("s_and_saveexec_b64 s[14:15], vcc")
        a(f"ds_read_b128 v[{u+4}:{u+7}], v{u+1}", lg=f"c{i}")
        if i == 2: a("s_mov_b64 exec, s[14:15]")
        a(f"v_mul_u32_u24 v{u+2}, s42, v{u}")
        a(f"v_lshrrev_b32 v{u+2}, 16, v{u+2}")
        a(f"v_mul_u32_u24 v{u+3}, 6, v{u+2}")
        a(f"v_sub_u32 v{u+3}, v{u}, v{u+3}")
        a(f"v_mul_u32_u24 v{u+2}, s43, v{u+2}")
        a(f"v_lshl_add_u32 v{u+2}, v{u+3}, 4, v{u+2}")
    a(f"v_lshlrev_b32 v70, 4, v0")
    a(f"v_add_u32 v71, {L1_KEY}, v70")
    a("v_cmp_gt_u32 vcc, 320, v0")
    a("s_and_saveexec_b64 s[44:45], vcc")
    a("ds_read_b128 v[72:75], v71", lg="k")
    a("s_mov_b64 exec, s[44:45]")
    a("v_lshrrev_b32 v76, 1, v0")
    a("v_lshlrev_b32 v76, 2, v76")
    a(f"v_add_u32 v76, {L1_INV}, v76")
    for i in range(4):
        a(f"ds_read_b32 v{78+i}, v76 offset:{1280*i}", lg=f"ie{i}")
    a(f"v_add_u32 v77, {L1_INV}, v5")
    for i in range(2):
        a(f"ds_read_b32 v{82+i}, v77 offset:{2560*i}", lg=f"is{i}")
    for i in range(3):
        u = 46 + i*8
        a.wait_lg(f"c{i}")
        if i == 2:
            a(f"v_cmp_gt_u32 vcc, 1500, v{u}")
            a("s_and_saveexec_b64 s[14:15], vcc")
        a(f"buffer_store_dwordx4 v[{u+4}:{u+7}], v{u+2}, s[32:35], s41 offen", vm=f"sc{i}")
        if i == 2: a("s_mov_b64 exec, s[14:15]")
    a(f"s_mul_i32 s46, s2, {CH*4}")
    a(f"s_add_u32 s46, s46, {WS_KEYX}")
    a.wait_lg("k")
    a("v_cmp_gt_u32 vcc, 320, v0")
    a("s_and_saveexec_b64 s[44:45], vcc")
    a("buffer_store_dwordx4 v[72:75], v70, s[32:35], s46 offen", vm="sk")
    a("s_mov_b64 exec, s[44:45]")
    a("v_and_b32 v84, 1, v0")
    a("v_lshlrev_b32 v84, 4, v84")
    a.wait_lg("is1")
    for i in range(4):
        a(f"v_lshl_add_u32 v{78+i}, v{78+i}, 5, v84")
    for i in range(2):
        a(f"v_lshlrev_b32 v{82+i}, 3, v{82+i}")
    a.wait_vm("sh")
    a("s_barrier")
    if STAMPS: a("s_memrealtime s[86:87]")
    for i in range(4):
        a(f"ds_read_b128 v[{88+4*i}:{91+4*i}], v{78+i} offset:{L1_E}", lg=f"pe{i}")
    for i in range(2):
        a(f"ds_read_b64 v[{104+2*i}:{105+2*i}], v{82+i} offset:{L1_S}", lg=f"ps{i}")
    a(f"s_mul_i32 s46, s2, {CH*32}")
    a(f"s_add_u32 s46, s46, {WS_E}")
    a(f"s_mul_i32 s47, s2, {CH*8}")
    a(f"s_add_u32 s47, s47, {WS_S}")
    a("v_add_u32 v85, 10240, v70")
    a("v_add_u32 v86, 20480, v70")
    a("v_add_u32 v87, 30720, v70")
    a("v_add_u32 v108, 5120, v3")
    offs = [70, 85, 86, 87]
    for i in range(4):
        a.wait_lg(f"pe{i}")
        a(f"buffer_store_dwordx4 v[{88+4*i}:{91+4*i}], v{offs[i]}, s[32:35], s46 offen")
    for i in range(2):
        a.wait_lg(f"ps{i}")
        a(f"buffer_store_dwordx2 v[{104+2*i}:{105+2*i}], v{3 if i == 0 else 108}, s[32:35], s47 offen")
    if STAMPS:
        a("s_waitcnt vmcnt(0)")
        a("s_memrealtime s[88:89]")
        a("s_mul_i32 s48, s2, 10"); a("s_add_u32 s48, s48, s3")
        stamp_out(a, 80, 6, 48, 0, 12)
    a.label("K1_end")
    a("s_endpgm")

CAP = 1536
L_LIST = 0
L_SPAY = L_LIST + CAP*8
L_MISC = L_SPAY + CAP*8
L_HIST2 = L_MISC
L_BASE2 = L_MISC + 512
L_FLAG = L_MISC + 1024
L_CG = L_MISC + 1280
L_WR = L_MISC + 2048
L_EPAY = 32768
L_RING = L_EPAY + CAP*32
L_END = L_RING + 65536
AGG_STRIDE = 272
D = 8; R = 8
for o in OPTS:
    if o.startswith("D="): D = int(o[2:])

S_X = 8; S_W = 12; S_O = 16; S_C = 20
S_WAVE = 24; S_RING = 25; S_START = 26; S_END = 27; S_REM = 28; S_REMN = 29
S_KEY = 32
S_OFF = 48
S_TMP = 50
S_MASK = 56
S_SV = 58
S_M1 = 60; S_M2 = 62; S_M3 = 64
S_PTR = 68
V_LANE = 1
V_XOFF = 2; V_TR = 3
V_KA = 4; V_SA = 5; V_EAA = 6
V_IA = 7; V_IB = 8; V_IK = 9
V_T0 = 10; V_T1 = 11; V_T2 = 12; V_T3 = 13; V_DUM = 14; V_T4 = 15
V_KEY = 16
V_SH = 18
V_EA = 20
V_A = 24
V_B = 28
V_T = 36
V_AD = 52
V_WR = 68
V_CG = 84
V_RW = 92
V_ACC = 124
V_WO = 164
NV2 = 180
V_K = 28
V_B2 = 40
V_R = 52
V_CNT = 92; V_IDX0 = 93; V_GB = 94; V_ONE = 95; V_P = 96

def gen_k2(a):
    kernel_header(a, "main_kernel")
    a(f"s_cmp_ge_u32 s2, {NB}")
    a("s_cbranch_scc1 K2_end")
    if STAMPS: a("s_memrealtime s[80:81]")
    a("s_load_dwordx2 s[4:5], s[0:1], 0")
    a(f"s_load_dwordx4 s[{S_PTR}:{S_PTR+3}], s[0:1], 40")
    a(f"s_load_dwordx4 s[{S_PTR+4}:{S_PTR+7}], s[0:1], 56")
    a("s_load_dwordx2 s[6:7], s[0:1], 80")
    a(f"v_and_b32 v{V_LANE}, 63, v0")
    a(f"v_lshrrev_b32 v{V_T0}, 6, v0")
    a(f"v_mul_u32_u24 v{V_T1}, 48, v0")
    a(f"v_readfirstlane_b32 s{S_WAVE}, v{V_T0}")
    a(f"v_lshlrev_b32 v{V_T2}, 2, v0")
    a(f"v_mov_b32 v{V_T3}, 0")
    a("v_cmp_gt_u32 vcc, 128, v0")
    a(f"s_and_saveexec_b64 s[{S_SV}:{S_SV+1}], vcc")
    a(f"ds_write_b32 v{V_T2}, v{V_T3} offset:{L_HIST2}")
    a(f"ds_write_b32 v{V_T2}, v{V_T3} offset:{L_FLAG}")
    a(f"s_mov_b64 exec, s[{S_SV}:{S_SV+1}]")
    a("s_waitcnt lgkmcnt(0)")
    srd(a, S_W, 6, 0, WS_END)
    a(f"s_mul_i32 s{S_TMP}, s2, 24000")
    for i in range(3):
        a(f"buffer_load_dwordx4 v[{V_K+4*i}:{V_K+4*i+3}], v{V_T1}, s[{S_W}:{S_W+3}], s{S_TMP} offen offset:{16*i}", vm=f"cell{i}")
    srd(a, S_X, 4, 0, N_NODES*1024)
    srd(a, S_O, S_PTR+6, 0, N_NODES*1024)
    a("s_barrier")
    a(f"v_lshlrev_b32 v{V_T2}, 4, v{V_LANE}")
    a(f"s_cmp_ge_u32 s{S_WAVE}, 4")
    a("s_cbranch_scc1 K2_cg")
    srd(a, S_C, S_PTR+2, 0, 4096)
    a(f"s_lshl_b32 s{S_TMP+1}, s{S_WAVE}, 10")
    a(f"s_add_u32 m0, s{S_TMP+1}, {L_WR}")
    a("s_nop 0")
    a(f"buffer_load_dwordx4 v{V_T2}, s[{S_C}:{S_C+3}], s{S_TMP+1} offen lds")
    a("s_branch K2_cgdone")
    a.label("K2_cg")
    srd(a, S_C, S_PTR, 0, 128)
    a(f"s_mov_b32 m0, {L_CG}")
    a("s_mov_b64 exec, 0xff")
    a(f"buffer_load_dwordx4 v{V_T2}, s[{S_C}:{S_C+3}], 0 offen lds")
    a("s_mov_b64 exec, -1")
    a.label("K2_cgdone")
    a.vm.append("const")
    srd(a, S_C, S_PTR+4, 0, 32768)
    a(f"v_lshrrev_b32 v{V_T2}, 4, v0")
    a(f"v_and_b32 v{V_T3}, 1, v{V_T2}")
    a(f"v_lshlrev_b32 v{V_T3}, 6, v{V_T3}")
    a(f"v_lshrrev_b32 v{V_T2}, 1, v{V_T2}")
    a(f"v_add_u32 v{V_T2}, v{V_T2}, v{V_T3}")
    a(f"v_lshlrev_b32 v{V_T2}, 8, v{V_T2}")
    a(f"v_and_b32 v{V_T3}, 15, v0")
    a(f"v_lshl_add_u32 v{V_T2}, v{V_T3}, 4, v{V_T2}")
    for i in range(4):
        if i == 0:
            a(f"buffer_load_dwordx4 v[{V_WO}:{V_WO+3}], v{V_T2}, s[{S_C}:{S_C+3}], 0 offen", vm="wo0")
        else:
            a(f"s_movk_i32 s{S_TMP+1}, {4096*i}")
            a(f"buffer_load_dwordx4 v[{V_WO+4*i}:{V_WO+4*i+3}], v{V_T2}, s[{S_C}:{S_C+3}], s{S_TMP+1} offen", vm=f"wo{i}")
    l = V_LANE
    a(f"v_bfe_u32 v{V_T2}, v{l}, 2, 2"); a(f"v_lshlrev_b32 v{V_XOFF}, 8, v{V_T2}")
    a(f"v_lshrrev_b32 v{V_T2}, 4, v{l}"); a(f"v_lshl_add_u32 v{V_XOFF}, v{V_T2}, 6, v{V_XOFF}")
    a(f"v_and_b32 v{V_T2}, 3, v{l}"); a(f"v_lshl_add_u32 v{V_XOFF}, v{V_T2}, 4, v{V_XOFF}")
    a(f"v_lshrrev_b32 v{V_T2}, 5, v{l}"); a(f"v_lshlrev_b32 v{V_TR}, 8, v{V_T2}")
    a(f"v_bfe_u32 v{V_T2}, v{l}, 2, 2"); a(f"v_lshl_add_u32 v{V_TR}, v{V_T2}, 6, v{V_TR}")
    a(f"v_bfe_u32 v{V_T2}, v{l}, 4, 1"); a(f"v_lshl_add_u32 v{V_TR}, v{V_T2}, 5, v{V_TR}")
    a(f"v_and_b32 v{V_T2}, 3, v{l}"); a(f"v_lshl_add_u32 v{V_TR}, v{V_T2}, 3, v{V_TR}")
    a(f"s_lshl_b32 s{S_RING}, s{S_WAVE}, 13")
    a(f"s_add_u32 s{S_RING}, s{S_RING}, {L_RING}")
    a(f"v_add_u32 v{V_TR}, s{S_RING}, v{V_TR}")
    a(f"v_lshrrev_b32 v{V_IA}, 2, v{l}")
    a(f"v_lshrrev_b32 v{V_T2}, 4, v{l}"); a(f"v_lshlrev_b32 v{V_IB}, 2, v{V_T2}")
    a(f"v_and_b32 v{V_T2}, 3, v{l}"); a(f"v_add_u32 v{V_IB}, v{V_IB}, v{V_T2}")
    a(f"v_and_b32 v{V_IK}, 15, v{l}")
    a(f"s_mov_b32 s{S_MASK}, 0xfffffc00")
    a(f"v_mov_b32 v{V_DUM}, 0x7ffffc00")
    for i in range(40):
        a(f"v_mov_b32 v{V_ACC+i}, 0")
    a(f"v_mov_b32 v{V_ONE}, 1")
    a(f"v_lshrrev_b32 v{V_GB}, 1, v0")
    a(f"v_mul_u32_u24 v{V_GB}, {CH}, v{V_GB}")
    a(f"v_and_b32 v{V_IDX0}, 1, v0")
    a(f"v_mul_u32_u24 v{V_IDX0}, 3, v{V_IDX0}")
    a(f"v_subrev_u32 v{V_IDX0}, 2, v{V_IDX0}")
    a.wait_vm("cell0")
    a(f"v_mov_b32_dpp v{V_CNT}, v{V_K} quad_perm:[0,0,2,2] row_mask:0xf bank_mask:0xf")
    a(f"v_cmp_gt_u32 vcc, 500, v0")
    a(f"v_lshrrev_b32 v{V_CNT}, 16, v{V_CNT}")
    a("s_nop 0")
    a(f"v_cndmask_b32 v{V_CNT}, 0, v{V_CNT}, vcc")
    a(f"v_cmp_lt_u32 vcc, {CCAP}, v{V_CNT}")
    a(f"s_and_saveexec_b64 s[{S_SV}:{S_SV+1}], vcc")
    a(f"v_mov_b32 v{V_T0}, {L_FLAG}")
    a(f"ds_write_b32 v{V_T0}, v{V_ONE}")
    a(f"s_mov_b64 exec, s[{S_SV}:{S_SV+1}]")
    a.wait_vm("cell2")
    a.label("K2_round")
    def valid(i):
        a(f"v_add_u32 v{V_T0}, {2*i}, v{V_IDX0}")
        a(f"v_cmp_lt_u32 vcc, v{V_T0}, v{V_CNT}")
    for i in range(12):
        valid(i)
        a(f"s_and_saveexec_b64 s[{S_SV}:{S_SV+1}], vcc")
        if i >= 1: a("s_cbranch_execz K2_p1done")
        a(f"v_bfe_u32 v{V_T1}, v{V_K+i}, 14, 3")
        a(f"v_bfe_u32 v{V_T2}, v{V_K+i}, 10, 4")
        a(f"v_lshlrev_b32 v{V_T2}, 2, v{V_T2}")
        a(f"v_lshl_add_u32 v{V_B2+i}, v{V_T1}, 6, v{V_T2}")
        a(f"ds_add_rtn_u32 v{V_R+i}, v{V_B2+i}, v{V_ONE} offset:{L_HIST2}")
        a(f"s_mov_b64 exec, s[{S_SV}:{S_SV+1}]")
    a.label("K2_p1done")
    a("s_mov_b64 exec, -1")
    a("s_waitcnt lgkmcnt(0)")
    a("s_barrier")
    if STAMPS: a("s_memrealtime s[82:83]")
    a(f"v_lshlrev_b32 v{V_T0}, 3, v{V_LANE}")
    a(f"ds_read_b64 v[{V_P}:{V_P+1}], v{V_T0} offset:{L_HIST2}")
    a(f"v_mov_b32 v{V_T1}, {L_FLAG}")
    a(f"ds_read_b32 v{V_T4}, v{V_T1}")
    a("s_waitcnt lgkmcnt(0)")
    a(f"v_add_u32 v{V_P+2}, v{V_P}, v{V_P+1}")
    a(f"v_mov_b32 v{V_P+3}, v{V_P+2}")
    a("s_nop 1")
    wave_scan(a, V_P+3)
    a(f"v_sub_u32 v{V_P+4}, v{V_P+3}, v{V_P+2}")
    a(f"v_add_u32 v{V_P+5}, v{V_P+4}, v{V_P}")
    a(f"ds_write_b64 v{V_T0}, v[{V_P+4}:{V_P+5}] offset:{L_BASE2}")
    a(f"s_lshl_b32 s{S_TMP}, s{S_WAVE}, 3")
    a(f"s_add_u32 s{S_TMP+1}, s{S_TMP}, 7")
    a(f"v_readlane_b32 s{S_START}, v{V_P+4}, s{S_TMP}")
    a(f"v_readlane_b32 s{S_END}, v{V_P+3}, s{S_TMP+1}")
    a(f"v_readlane_b32 s{S_TMP+2}, v{V_P+3}, 63")
    a(f"v_readfirstlane_b32 s{S_TMP+3}, v{V_T4}")
    a(f"s_cmp_gt_u32 s{S_TMP+2}, {CAP}")
    a("s_cbranch_scc1 K2_slow")
    a(f"s_cmp_lg_u32 s{S_TMP+3}, 0")
    a("s_cbranch_scc1 K2_slow")
    a(f"v_mov_b32_dpp v{V_T1}, v{V_P+4} row_shr:7 row_mask:0xf bank_mask:0xf bound_ctrl:0")
    a(f"v_sub_u32 v{V_T1}, v{V_P+3}, v{V_T1}")
    a(f"v_cmp_lt_u32 vcc, 256, v{V_T1}")
    a(f"s_mov_b32 s{S_TMP+4}, 0x80808080")
    a(f"s_and_b32 s{S_TMP+5}, vcc_lo, s{S_TMP+4}")
    a(f"s_and_b32 s{S_TMP+4}, vcc_hi, s{S_TMP+4}")
    a(f"s_or_b32 s{S_TMP+4}, s{S_TMP+4}, s{S_TMP+5}")
    a("s_cbranch_scc1 K2_slow")
    a("s_waitcnt lgkmcnt(0)")
    for i in range(12):
        valid(i)
        a(f"s_and_saveexec_b64 s[{S_SV}:{S_SV+1}], vcc")
        if i >= 1: a("s_cbranch_execz K2_p3a")
        a(f"ds_read_b32 v{V_P+i}, v{V_B2+i} offset:{L_BASE2}")
        a(f"s_mov_b64 exec, s[{S_SV}:{S_SV+1}]")
    a.label("K2_p3a")
    a("s_mov_b64 exec, -1")
    a("s_waitcnt lgkmcnt(0)")
    for i in range(12):
        valid(i)
        a(f"s_and_saveexec_b64 s[{S_SV}:{S_SV+1}], vcc")
        if i >= 1: a("s_cbranch_execz K2_p3b")
        a(f"v_add_u32 v{V_T1}, v{V_P+i}, v{V_R+i}")
        a(f"v_lshlrev_b32 v{V_T1}, 3, v{V_T1}")
        a(f"v_and_b32 v{V_T2}, 0x3fff, v{V_K+i}")
        a(f"v_lshlrev_b32 v{V_T2}, 10, v{V_T2}")
        a(f"v_bfe_u32 v{V_T3}, v{V_K+i}, 17, 3")
        d = V_B2 + 2*(i % 2)
        a(f"v_lshl_or_b32 v{d}, v{V_T3}, 3, v{V_T2}")
        a(f"v_lshrrev_b32 v{V_T3}, 20, v{V_K+i}")
        a(f"v_add_u32 v{d+1}, v{V_T3}, v{V_GB}")
        a(f"ds_write_b64 v{V_T1}, v[{d}:{d+1}] offset:{L_LIST}")
        a(f"s_mov_b64 exec, s[{S_SV}:{S_SV+1}]")
    a.label("K2_p3b")
    a("s_mov_b64 exec, -1")
    a.wait_vm("const")
    a("s_waitcnt lgkmcnt(0)")
    a("s_barrier")
    if STAMPS: a("s_memrealtime s[84:85]")
    a(f"v_lshrrev_b32 v{V_T0}, 1, v{V_LANE}")
    a(f"v_add_u32 v{V_T0}, s{S_START}, v{V_T0}")
    a(f"v_lshlrev_b32 v{V_T1}, 3, v{V_T0}")
    for i in range(8):
        a(f"ds_read_b32 v{V_P+i}, v{V_T1} offset:{L_LIST + 4 + 256*i}")
    a(f"v_bfe_u32 v{V_T2}, v{V_LANE}, 2, 2")
    a(f"v_lshlrev_b32 v{V_T3}, 8, v{V_T2}")
    a(f"v_lshrrev_b32 v{V_T4}, 4, v{V_LANE}")
    a(f"v_lshl_add_u32 v{V_T3}, v{V_T4}, 5, v{V_T3}")
    a(f"v_and_b32 v{V_T4}, 3, v{V_LANE}")
    a(f"v_lshl_add_u32 v{V_T3}, v{V_T4}, 3, v{V_T3}")
    for h in range(2):
        for kc in range(4):
            w = V_WR + (h*4+kc)*2
            a(f"ds_read_b64_tr_b16 v[{w}:{w+1}], v{V_T3} offset:{L_WR + kc*1024 + h*128}")
    a(f"v_lshlrev_b32 v{V_T2}, 3, v{V_T2}")
    for u in range(4):
        a(f"ds_read_b64_tr_b16 v[{V_CG+2*u}:{V_CG+2*u+1}], v{V_T2} offset:{L_CG + 32*u}")
    a(f"v_and_b32 v{V_T2}, 1, v{V_LANE}")
    a(f"v_lshlrev_b32 v{V_T3}, 4, v{V_T2}")
    a(f"v_lshlrev_b32 v{V_T2}, 2, v{V_T2}")
    a(f"s_lshl_b32 s{S_TMP}, s{S_START}, 5")
    a(f"s_add_u32 s{S_TMP}, s{S_TMP}, {L_EPAY}")
    a(f"s_lshl_b32 s{S_TMP+1}, s{S_START}, 3")
    a(f"s_add_u32 s{S_TMP+1}, s{S_TMP+1}, {L_SPAY}")
    a(f"s_mov_b32 s{S_TMP+2}, {WS_E}")
    a(f"s_mov_b32 s{S_TMP+3}, {WS_S}")
    a(f"s_sub_u32 s{S_REM}, s{S_END}, s{S_START}")
    a("s_waitcnt lgkmcnt(12)")
    for i in range(8):
        a(f"s_cmp_le_i32 s{S_REM}, {32*i}")
        a("s_cbranch_scc1 K2_p4done")
        a(f"v_add_u32 v{V_T4}, {32*i}, v{V_T0}")
        a(f"v_cmp_gt_u32 vcc, s{S_END}, v{V_T4}")
        a(f"v_lshl_add_u32 v{V_T4}, v{V_P+i}, 5, v{V_T3}")
        a(f"v_lshl_add_u32 v{V_P+i}, v{V_P+i}, 3, v{V_T2}")
        a(f"s_and_saveexec_b64 s[{S_SV}:{S_SV+1}], vcc")
        a(f"s_add_u32 m0, s{S_TMP}, {1024*i}")
        a("s_nop 0")
        a(f"buffer_load_dwordx4 v{V_T4}, s[{S_W}:{S_W+3}], s{S_TMP+2} offen lds")
        a(f"s_add_u32 m0, s{S_TMP+1}, {256*i}")
        a("s_nop 0")
        a(f"buffer_load_dword v{V_P+i}, s[{S_W}:{S_W+3}], s{S_TMP+3} offen lds")
        a(f"s_mov_b64 exec, s[{S_SV}:{S_SV+1}]")
    a.label("K2_p4done")
    a("s_mov_b64 exec, -1")
    a(f"v_add_u32 v{V_KA}, s{S_START}, v{V_IK}")
    a(f"v_lshlrev_b32 v{V_KA}, 3, v{V_KA}")
    a(f"v_add_u32 v{V_SA}, s{S_START}, v{V_IA}")
    a(f"v_lshlrev_b32 v{V_SA}, 3, v{V_SA}")
    a(f"v_add_u32 v{V_EAA}, s{S_START}, v{V_IB}")
    a(f"v_lshlrev_b32 v{V_EAA}, 5, v{V_EAA}")
    a(f"v_bfe_u32 v{V_T2}, v{V_LANE}, 2, 2")
    a(f"v_lshl_add_u32 v{V_EAA}, v{V_T2}, 3, v{V_EAA}")
    a(f"v_add_u32 v{V_EAA}, {L_EPAY}, v{V_EAA}")
    a(f"s_cmp_eq_u32 s{S_REM}, 0")
    a("s_cbranch_scc1 K2_loopdone")

    def KEY_read(t):
        a(f"ds_read_b32 v{V_KEY + t%2}, v{V_KA} offset:{L_LIST}", lg=("key", t))
        a(f"v_add_u32 v{V_KA}, 128, v{V_KA}")
    def PAY_read(t):
        p = t % 2
        a(f"ds_read_b64 v[{V_SH}:{V_SH+1}], v{V_SA} offset:{L_SPAY}", lg=("sh", t))
        a(f"ds_read_b64 v[{V_EA+2*p}:{V_EA+2*p+1}], v{V_EAA}", lg=("ea", t))
        a(f"v_add_u32 v{V_SA}, 128, v{V_SA}")
        a(f"v_add_u32 v{V_EAA}, 512, v{V_EAA}")
    def MASKS(rem_s):
        a(f"v_cmp_gt_i32 s[{S_M1}:{S_M1+1}], s{rem_s}, v{V_IK}")
        a(f"v_cmp_gt_i32 s[{S_M2}:{S_M2+1}], s{rem_s}, v{V_IA}")
        a(f"v_cmp_gt_i32 s[{S_M3}:{S_M3+1}], s{rem_s}, v{V_IB}")
    def KEY_fix(t, site):
        a.wait_lg(("key", t), site)
        a(f"v_cndmask_b32 v{V_KEY + t%2}, v{V_DUM}, v{V_KEY + t%2}, s[{S_M1}:{S_M1+1}]")
    def PAY_fix(t, site):
        p = t % 2
        a.wait_lg(("ea", t), site)
        for r in range(2):
            a(f"v_cndmask_b32 v{V_SH+r}, 0, v{V_SH+r}, s[{S_M2}:{S_M2+1}]")
        for r in range(2):
            a(f"v_cndmask_b32 v{V_EA+2*p+r}, 0, v{V_EA+2*p+r}, s[{S_M3}:{S_M3+1}]")
    def A_mfma(t):
        for u in range(4):
            a(f"v_mfma_f32_4x4x4_16b_bf16 v[{V_AD+4*u}:{V_AD+4*u+3}], v[{V_SH}:{V_SH+1}], v[{V_CG+2*u}:{V_CG+2*u+1}], 0")
    def A_cvt(t):
        p = t % 2
        a(f"v_cvt_pk_bf16_f32 v{V_A+2*p}, v{V_AD}, v{V_AD+4}")
        a(f"v_cvt_pk_bf16_f32 v{V_A+2*p+1}, v{V_AD+8}, v{V_AD+12}")
    def RW(t, q, kc):
        p = t % 2
        for h in range(2):
            d = V_RW + (q*2+h)*4
            w = V_WR + (h*4+kc)*2
            c = "0" if kc == 0 else f"v[{d}:{d+3}]"
            a(f"v_mfma_f32_4x4x4_16b_bf16 v[{d}:{d+3}], v[{V_EA+2*p}:{V_EA+2*p+1}], v[{w}:{w+1}], {c} cbsz:4 abid:{4*q+kc}")
    def X_issue(e):
        t, j = divmod(e, 16)
        k = S_KEY + j
        so = S_OFF + (e % 2)
        a(f"v_readlane_b32 s{k}, v{V_KEY + t%2}, {j}")
        a(f"s_and_b32 s{so}, s{k}, s{S_MASK}")
        a(f"s_add_u32 m0, s{S_RING}, {(e % R)*1024}")
        a("s_nop 0")
        a(f"buffer_load_dwordx4 v{V_XOFF}, s[{S_X}:{S_X+3}], s{so} offen lds", vm=("x", e))
    def X_read(e, site):
        a.wait_vm(("x", e), site)
        b = V_B + (e % 2)*4
        a(f"ds_read_b64_tr_b16 v[{b}:{b+1}], v{V_TR} offset:{(e%R)*1024}", lg=("b0", e))
        a(f"ds_read_b64_tr_b16 v[{b+2}:{b+3}], v{V_TR} offset:{(e%R)*1024+512}", lg=("b1", e))
    def TP(e, site):
        t, j = divmod(e, 16)
        p = t % 2
        a.wait_lg(("b1", e), site)
        b = V_B + (e % 2)*4
        d = V_T + (e % 2)*8
        for h in range(2):
            a(f"v_mfma_f32_4x4x4_16b_bf16 v[{d+4*h}:{d+4*h+3}], v[{V_A+2*p}:{V_A+2*p+1}], v[{b+2*h}:{b+2*h+1}], 0 cbsz:4 abid:{j}")
    def ACC(e):
        t, j = divmod(e, 16)
        q, r = divmod(j, 4)
        d = V_T + (e % 2)*8
        a(f"s_set_gpr_idx_on s{S_KEY+j}, gpr_idx(SRC2,DST)")
        for h in range(2):
            rw = V_RW + (q*2+h)*4 + (r & ~1)
            sel = "op_sel:[0,1,0] op_sel_hi:[1,1,1]" if r & 1 else "op_sel_hi:[1,0,1]"
            for wp in range(2):
                ac = V_ACC + h*4 + wp*2
                a(f"v_pk_fma_f32 v[{ac}:{ac+1}], v[{d+4*h+2*wp}:{d+4*h+2*wp+1}], v[{rw}:{rw+1}], v[{ac}:{ac+1}] {sel}")
        a("s_set_gpr_idx_off")

    a.lg = []; a.vm = []
    KEY_read(0)
    MASKS(S_REM)
    KEY_fix(0, None)
    for e in range(D):
        X_issue(e)
    a(f"s_waitcnt vmcnt({D})")
    PAY_read(0)
    PAY_fix(0, None)
    a("s_nop 1")
    A_mfma(0)
    for q in range(3):
        for kc in range(4):
            RW(0, q, kc)
            if q == 0 and kc == 0: pass
            a("s_nop 1")
    A_cvt(0)
    X_read(0, None); X_read(1, None)
    TP(0, None)
    a(f"s_sub_u32 s{S_REMN}, s{S_REM}, 16")
    if STAMPS: a("s_memrealtime s[86:87]")
    def iteration(t):
        b = 16 * t
        par = t % 2
        for j in range(16):
            e = b + j
            st = lambda n: (n, par, j)
            if j == 0:
                KEY_read(t+1); PAY_read(t+1); MASKS(S_REMN)
            if j == 2:
                KEY_fix(t+1, st("kf")); PAY_fix(t+1, st("pf"))
            X_issue(e + D)
            X_read(e + 2, st("xr"))
            TP(e + 1, st("tp"))
            if j < 4: RW(t, 3, j)
            else: RW(t+1, (j-4)//4, j % 4)
            if j == 5: A_mfma(t+1)
            if j == 8: A_cvt(t+1)
            ACC(e)
            if j % 4 == 3:
                a(f"s_cmp_le_i32 s{S_REM}, {j+1}")
                a("s_cbranch_scc1 K2_loopdone")
        a(f"s_mov_b32 s{S_REM}, s{S_REMN}")
        a(f"s_sub_u32 s{S_REMN}, s{S_REMN}, 16")
    if not a.final:
        for t in range(6): iteration(t)
    else:
        a.label("K2_loop")
        iteration(0)
        iteration(1)
        a("s_branch K2_loop")
    a.label("K2_loopdone")
    a("s_waitcnt vmcnt(0) lgkmcnt(0)")
    if STAMPS: a("s_memrealtime s[88:89]")
    a(f"v_lshlrev_b32 v{V_T0}, 2, v{V_LANE}")
    a(f"v_add_u32 v{V_T0}, s{S_RING}, v{V_T0}")
    for slot in range(5):
        for w in range(4):
            a(f"v_cvt_pk_bf16_f32 v{V_T+w}, v{V_ACC+slot*8+w}, v{V_ACC+slot*8+4+w}")
            a(f"ds_write_b32 v{V_T0}, v{V_T+w} offset:{(slot*4+w)*AGG_STRIDE}")
    a("s_waitcnt lgkmcnt(0)")
    a("s_barrier")
    a(f"v_lshlrev_b32 v{V_T0}, 4, v0")
    a(f"v_add_u32 v{V_T0}, {L_EPAY}, v{V_T0}")
    for i in range(4):
        a(f"ds_write_b128 v{V_T0}, v[{V_WO+4*i}:{V_WO+4*i+3}] offset:{8192*i}")
    a(f"v_and_b32 v{V_T1}, 15, v{V_LANE}")
    a(f"v_lshrrev_b32 v{V_T2}, 4, v{V_LANE}")
    AL = V_RW; AO = V_RW + 10
    a(f"s_movk_i32 s{S_TMP}, 3277")
    a(f"s_lshl_b32 s{S_TMP+1}, s{S_WAVE}, 5")
    for jt in range(10):
        a(f"v_add_u32 v{V_T3}, {16*jt}, v{V_T1}")
        a(f"v_mul_u32_u24 v{V_T4}, s{S_TMP}, v{V_T3}")
        a(f"v_lshrrev_b32 v{V_T4}, 16, v{V_T4}")
        a(f"v_mul_u32_u24 v{V_KA}, 20, v{V_T4}")
        a(f"v_sub_u32 v{V_T3}, v{V_T3}, v{V_KA}")
        a(f"v_mul_u32_u24 v{V_KA}, {AGG_STRIDE}, v{V_T3}")
        a(f"v_lshl_add_u32 v{V_KA}, v{V_T4}, 13, v{V_KA}")
        a(f"v_lshl_add_u32 v{V_KA}, v{V_T2}, 4, v{V_KA}")
        a(f"v_add_u32 v{AL+jt}, {L_RING}, v{V_KA}")
        a(f"v_lshrrev_b32 v{V_KA}, 2, v{V_T3}")
        a(f"v_lshl_add_u32 v{V_KA}, v{V_KA}, 3, v{V_T4}")
        a(f"v_and_b32 v{V_T3}, 3, v{V_T3}")
        a(f"v_lshl_add_u32 v{V_KA}, v{V_KA}, 2, v{V_T3}")
        a(f"v_lshlrev_b32 v{V_KA}, 8, v{V_KA}")
        a(f"v_lshl_add_u32 v{V_KA}, v{V_T2}, 3, v{V_KA}")
        a(f"v_add_u32 v{AO+jt}, s{S_TMP+1}, v{V_KA}")
    a(f"v_lshlrev_b32 v{V_T1}, 3, v{V_T2}")
    a(f"v_bfe_u32 v{V_T3}, v{V_LANE}, 2, 2")
    a(f"v_add_u32 v{V_T1}, v{V_T1}, v{V_T3}")
    a(f"v_lshlrev_b32 v{V_T1}, 8, v{V_T1}")
    a(f"v_and_b32 v{V_T3}, 3, v{V_LANE}")
    a(f"v_lshl_add_u32 v{V_T1}, v{V_T3}, 3, v{V_T1}")
    a(f"v_add_u32 v{V_T1}, s{S_TMP+1}, v{V_T1}")
    a(f"v_add_u32 v{V_T1}, {L_EPAY}, v{V_T1}")
    a("s_waitcnt lgkmcnt(0)")
    a("s_barrier")
    WF = V_WR
    a.lg = []
    for ks in range(4):
        for half in range(2):
            a(f"ds_read_b64_tr_b16 v[{WF+ks*4+half*2}:{WF+ks*4+half*2+1}], v{V_T1} offset:{(32*ks+4*half)*256}", lg=("wf", ks, half))
    BF = V_ACC
    DO = V_T
    OO = V_T + 8
    a(f"s_mul_i32 s{S_TMP+2}, s2, {NPB*1024}")
    def bread(jt):
        bf = BF + (jt % 2)*16
        for ks in range(4):
            a(f"ds_read_b128 v[{bf+ks*4}:{bf+ks*4+3}], v{AL+jt} offset:{ks*64}", lg=("bf", jt, ks))
    bread(0)
    for jt in range(10):
        if jt + 1 < 10: bread(jt+1)
        a.wait_lg(("bf", jt, 3))
        bf = BF + (jt % 2)*16
        d = DO + (jt % 2)*4
        for ks in range(4):
            c = "0" if ks == 0 else f"v[{d}:{d+3}]"
            a(f"v_mfma_f32_16x16x32_bf16 v[{d}:{d+3}], v[{WF+ks*4}:{WF+ks*4+3}], v[{bf+ks*4}:{bf+ks*4+3}], {c}")
        if jt >= 1:
            pd = DO + ((jt-1) % 2)*4; o = OO + ((jt-1) % 2)*2
            a(f"v_cvt_pk_bf16_f32 v{o}, v{pd}, v{pd+1}")
            a(f"v_cvt_pk_bf16_f32 v{o+1}, v{pd+2}, v{pd+3}")
            a(f"buffer_store_dwordx2 v[{o}:{o+1}], v{AO+jt-1}, s[{S_O}:{S_O+3}], s{S_TMP+2} offen")
    a("s_nop 7")
    pd = DO + (9 % 2)*4; o = OO + (9 % 2)*2
    a(f"v_cvt_pk_bf16_f32 v{o}, v{pd}, v{pd+1}")
    a(f"v_cvt_pk_bf16_f32 v{o+1}, v{pd+2}, v{pd+3}")
    a(f"buffer_store_dwordx2 v[{o}:{o+1}], v{AO+9}, s[{S_O}:{S_O+3}], s{S_TMP+2} offen")
    if STAMPS:
        a("s_waitcnt vmcnt(0)")
        a("s_memrealtime s[90:91]")
        a(f"s_lshl_b32 s48, s2, 3"); a(f"s_add_u32 s48, s48, s{S_WAVE}")
        stamp_out(a, 80, 6, 48, 1, 6)
    a("s_branch K2_end")
    a.label("K2_slow")
    a("s_endpgm")
    a.label("K2_end")
    a("s_endpgm")

def gen(final):
    a = G(); a.final = final
    a.raw(f"; @launch kernel=bin_kernel grid=({NB},1,1) block=({K1_T},1,1) lds={L1_END}")
    a.raw(f"; @launch kernel=main_kernel grid=({NB},1,1) block=(512,1,1) lds={L_END}")
    a.raw('.amdgcn_target "amdgcn-amd-amdhsa--gfx950"')
    a.raw(".text")
    gen_k1(a)
    a.lg = []; a.vm = []
    gen_k2(a)
    a.raw('.section .rodata,"a"')
    descriptor(a, "bin_kernel", 112, 96)
    descriptor(a, "main_kernel", NV2, 96)
    return a

gen(False)
a = gen(True)
open(OUT, "w").write(a.text())
```
